```python
import torch

def _softmax(x, axis=-1):
    return torch.softmax(x, dim=axis)
def _gelu(x):
    return torch.nn.functional.gelu(x, approximate="tanh")
def _silu(x):
    return torch.nn.functional.silu(x)
def _sigmoid(x):
    return torch.sigmoid(x)
def _layernorm(x, axis=-1, eps=1e-5):
    m = x.mean(dim=axis, keepdim=True)
    v = x.var(dim=axis, keepdim=True, unbiased=False)
    return (x - m) / torch.sqrt(v + eps)
def _scatter_add(tgt, idx, src, axis=0):
    return tgt.clone().index_add_(axis, idx, src)
def _segment_sum(src, seg, n):
    out = torch.zeros((n,) + src.shape[1:], dtype=src.dtype)
    return out.index_add_(0, seg, src)
def _pad(x, pw):
    flat = tuple(v for pair in reversed(pw) for v in pair)
    return torch.nn.functional.pad(x, flat)

kernel_name = 'concat_heads__gqa_block_cached__gqa_block_cached__near_ridge'

def setup_inputs():

    _w = (lambda a: (lambda t: t.to(torch.bfloat16) if t.is_floating_point() else t)(torch.as_tensor(a)))
    def _A_setup():
        B, Sq, D = 32, 48, 512
        Hq, Hkv, Sk, Dh = 32, 8, 512, 128
        assert Hq % Hkv == 0, (Hq, Hkv)
        return {
            "x": _w((lambda *s: torch.randn(*s, dtype=torch.bfloat16) * 0.8)(B, Sq, D)),
            "k_cache": _w((lambda *s: torch.randn(*s, dtype=torch.bfloat16) * 0.8)(B, Hkv, Sk, Dh)),
            "v_cache": _w((lambda *s: torch.randn(*s, dtype=torch.bfloat16) * 0.05)(B, Hkv, Sk, Dh)),
            "wq": _w((lambda *s: torch.randn(*s, dtype=torch.bfloat16) * 0.8)(D, Hq * Dh) * (D ** -0.5)),
            "wo": _w((lambda *s: torch.randn(*s, dtype=torch.bfloat16) * 0.05)(Hq * Dh, D) * ((Hq * Dh) ** -0.5)),
        }
    _A_in = _A_setup()

    def _B_setup():
        B, Sq, D = 32, 48, 512
        Hq, Hkv, Sk, Dh = 32, 8, 512, 128
        assert Hq % Hkv == 0, (Hq, Hkv)
        return {
            "x": _w((lambda *s: torch.randn(*s, dtype=torch.bfloat16) * 0.8)(B, Sq, D)),
            "k_cache": _w((lambda *s: torch.randn(*s, dtype=torch.bfloat16) * 0.8)(B, Hkv, Sk, Dh)),
            "v_cache": _w((lambda *s: torch.randn(*s, dtype=torch.bfloat16) * 0.05)(B, Hkv, Sk, Dh)),
            "wq": _w((lambda *s: torch.randn(*s, dtype=torch.bfloat16) * 0.8)(D, Hq * Dh) * (D ** -0.5)),
            "wo": _w((lambda *s: torch.randn(*s, dtype=torch.bfloat16) * 0.05)(Hq * Dh, D) * ((Hq * Dh) ** -0.5)),
        }
    _B_in = _B_setup()

    return {
        "A_x": _A_in["x"],
        "A_k_cache": _A_in["k_cache"],
        "A_v_cache": _A_in["v_cache"],
        "A_wq": _A_in["wq"],
        "A_wo": _A_in["wo"],
        "B_x": _B_in["x"],
        "B_k_cache": _B_in["k_cache"],
        "B_v_cache": _B_in["v_cache"],
        "B_wq": _B_in["wq"],
        "B_wo": _B_in["wo"],
    }

def reference(A_x, A_k_cache, A_v_cache, A_wq, A_wo, B_x, B_k_cache, B_v_cache, B_wq, B_wo):
    def _A_ref(x, k_cache, v_cache, wq, wo):
        B, Sq, D = x.shape
        Hq, Dh = 32, 128
        Hkv = k_cache.shape[1]
        rep = Hq // Hkv
        q = (lambda x, *d: x.permute(*d))((x @ wq).reshape(B, Sq, Hq, Dh), 0, 2, 1, 3)
        k = (lambda x, n, axis: torch.repeat_interleave(x, n, dim=axis))(k_cache, rep, axis=1)
        v = (lambda x, n, axis: torch.repeat_interleave(x, n, dim=axis))(v_cache, rep, axis=1)
        scores = torch.einsum("bhqd,bhkd->bhqk", q, k) * (Dh ** -0.5)
        p = _softmax(scores, axis=-1)
        o = torch.einsum("bhqk,bhkd->bhqd", p, v)
        return (lambda x, *d: x.permute(*d))(o, 0, 2, 1, 3).reshape(B, Sq, Hq * Dh) @ wo

    def _B_ref(x, k_cache, v_cache, wq, wo):
        B, Sq, D = x.shape
        Hq, Dh = 32, 128
        Hkv = k_cache.shape[1]
        rep = Hq // Hkv
        q = (lambda x, *d: x.permute(*d))((x @ wq).reshape(B, Sq, Hq, Dh), 0, 2, 1, 3)
        k = (lambda x, n, axis: torch.repeat_interleave(x, n, dim=axis))(k_cache, rep, axis=1)
        v = (lambda x, n, axis: torch.repeat_interleave(x, n, dim=axis))(v_cache, rep, axis=1)
        scores = torch.einsum("bhqd,bhkd->bhqk", q, k) * (Dh ** -0.5)
        p = _softmax(scores, axis=-1)
        o = torch.einsum("bhqk,bhkd->bhqd", p, v)
        return (lambda x, *d: x.permute(*d))(o, 0, 2, 1, 3).reshape(B, Sq, Hq * Dh) @ wo

    a = _A_ref(A_x, A_k_cache, A_v_cache, A_wq, A_wo)
    b = _B_ref(B_x, B_k_cache, B_v_cache, B_wq, B_wo)
    return torch.concatenate([a, b], axis=-1)
```

```python
NAME = "concat_heads__gqa_block_cached__gqa_block_cached__near_ridge"

class Asm:
    def __init__(self):
        self.lines = []
        self.nlabel = 0
    def __call__(self, s=""):
        for l in s.split("\n"):
            self.lines.append(l)
    def label(self, base="L"):
        self.nlabel += 1
        return "%s_%d" % (base, self.nlabel)
    def text(self):
        return "\n".join(self.lines) + "\n"

def header(launches):
    out = []
    for lab, g, b, lds in launches:
        if lab is None:
            out.append("; @launch grid=(%d,1,1) block=(%d,1,1) lds=%d" % (g, b, lds))
        else:
            out.append("; @launch kernel=%s grid=(%d,1,1) block=(%d,1,1) lds=%d" % (lab, g, b, lds))
    out.append('.amdgcn_target "amdgcn-amd-amdhsa--gfx950"')
    out.append(".text")
    return "\n".join(out) + "\n"

def kernel_start(label):
    return ".globl %s\n.p2align 8\n.type %s,@function\n%s:\n" % (label, label, label)

def descriptor(label, vgpr, accum, sgpr=102):
    return """.amdhsa_kernel %s
  .amdhsa_next_free_vgpr %d
  .amdhsa_next_free_sgpr %d
  .amdhsa_accum_offset %d
  .amdhsa_group_segment_fixed_size 0
  .amdhsa_kernarg_size 104
  .amdhsa_user_sgpr_count 2
  .amdhsa_user_sgpr_kernarg_segment_ptr 1
  .amdhsa_system_sgpr_workgroup_id_x 1
  .amdhsa_float_denorm_mode_32 3
.end_amdhsa_kernel
""" % (label, vgpr, sgpr, accum)

RODATA = '.section .rodata,"a"\n.p2align 6\n'
```

```python
import struct
import sys
sys.path.insert(0, "code")
from asmlib import *
from sched import *

HALF = 81920
U = 8192
sX, sWQ, sK, sV, sWO, sOUT, sWS = 8, 12, 16, 20, 24, 28, 32
S_W, S_CL = 38, 39
S_WQO, S_XO, S_KVO, S_WOO = 40, 43, 45, 49
S_LB, S_LBX, S_LBO, S_CNT, S_SC = 52, 53, 54, 55, 56
S_PC, S_PD = 58, 66
S_STAMP = 76
WA, XA, KA, VA = 4, 8, 12, 16
VWQ, VX, VK, VV, LW, QR, L0 = 18, 19, 20, 21, 22, 23, 24
SB = 32
OB = 64
KVB = 96


def f2u(x):
    return struct.unpack('<I', struct.pack('<f', x))[0]


def srd(s):
    return "s[%d:%d]" % (s, s + 3)


DEF = dict(kvnt=' nt', wqp='', wop='', xp='', stamps=(), stop=None, codepf=1,
           kviss={1: [0, 1], 9: [2, 3], 23: [4, 5], 27: [6, 7]},
           pre={19: [0, 1], 23: [2]}, nearly=6, spin=200000, force_slow=0, blk=4, qpre={}, wotouch=9, touch=1, tp='', lgage=200, dmagap=2, oexp=8, owexp=5)


class Gen:
    def __init__(self, **kw):
        self.o = dict(DEF)
        self.o.update(kw)
        self.S = Sched()
        self.nstamp = 0
        self.hunit = {}

    def stamp(self, g, name):
        self.S.put(g, CMT("@" + name))
        if name in self.o['stamps']:
            r = S_STAMP + 4 * list(self.o['stamps']).index(name)
            self.nstamp += 1
            self.S.put(g, [I("s_memrealtime %s" % R('s', r, 2)), I("s_memtime %s" % R('s', r + 2, 2))])

    def lines(self, g, txt):
        for l in txt.strip().split("\n"):
            l = l.strip()
            if l:
                self.S.put(g, I(l))

    def raw(self, txt):
        return [I(l.strip(), kind='raw') if not l.strip().endswith(':') else I(l.strip()) for l in txt.strip().split("\n") if l.strip()]

    def dma_group(self, voff, s, soffs, base, unit, content, priv, pol, adv):
        out = []
        for j, so in enumerate(soffs):
            d = I("buffer_load_dwordx4 v%d, %s, %s offen offset:%d%s lds" % (voff, srd(s), so, 1024 * j, pol),
                  tag=content, lw=(unit, content, priv))
            d.m0 = (base, unit * U)
            out.append(d)
        if adv:
            out[-1] = [out[-1], I("v_add_u32 v%d, %d, v%d" % (voff, adv, voff))]
        return out

    def dma_w(self, s):
        return self.dma_group(VWQ, sWQ, ['0', 's40', 's41', 's42'], S_LB, 4 + s % 4, ('w', s), True, self.o['wqp'], 0x20000)

    def dma_x(self, S):
        return self.dma_group(VX, sX, ['0', 's43', 's44'], S_LBX, 8 + S % 2, ('x', S), False, self.o['xp'], 128)

    def dma_h(self, i, unit):
        self.hunit[i] = unit
        assert (unit >= 2) if i & 1 else (unit <= 7)
        return self.dma_group(VV if i & 1 else VK, sV if i & 1 else sK, ['s45', 's46', 's47', 's48'], S_LB, unit,
                              ('h', i), False, self.o['kvnt'], 8192)

    def read_h(self, i):
        u, b = self.hunit[i], KVB + 32 * (i % 5)
        out = []
        if i & 1 == 0:
            for s in range(8):
                out.append(I("ds_read_b128 %s, v%d offset:%d" % (R('a', b + 4 * s, 4), KA + (s & 3), u * U + (s >> 2) * 1024),
                             lr=(u, ('h', i), False), vt=('h', i, s), tag='hr'))
        else:
            for tt in range(2):
                for T in range(4):
                    for uu in range(2):
                        out.append(I("ds_read_b64_tr_b16 %s, v%d offset:%d" % (
                            R('a', b + 16 * tt + 4 * T + 2 * uu, 2), VA + (T & 1),
                            (u - 2) * U + uu * 4096 + (2 * tt + (T >> 1)) * 1024),
                            lr=(u, ('h', i), False), vt=('h', i, 4 * tt + T), tag='hr'))
        return out

    def prologue(self):
        o, g = self.o, -1
        self.lines(g, """
        s_cmp_ge_u32 s2, 256
        s_cbranch_scc1 L_end""")
        self.stamp(g, 'start')
        self.lines(g, """
        s_load_dwordx2 s[28:29], s[0:1], 80
        s_load_dwordx2 s[36:37], s[0:1], 88
        s_load_dwordx2 s[32:33], s[0:1], 96
        s_and_b32 s3, s2, 7
        s_lshr_b32 s4, s2, 3
        s_lshr_b32 s5, s3, 2
        s_mul_i32 s6, s5, 40
        s_add_u32 s0, s0, s6
        s_addc_u32 s1, s1, 0
        s_load_dwordx2 s[8:9], s[0:1], 0
        s_load_dwordx2 s[12:13], s[0:1], 24
        s_load_dwordx2 s[16:17], s[0:1], 8
        s_load_dwordx2 s[20:21], s[0:1], 16
        s_load_dwordx2 s[24:25], s[0:1], 32
        """)
        if o['codepf']:
            self.lines(g, """
            s_getpc_b64 s[74:75]
            L_pc:
            v_lshlrev_b32 v1, 7, v0
            v_mov_b32 v3, s75
            v_add_co_u32 v2, vcc, s74, v1
            v_addc_co_u32 v3, vcc, 0, v3, vcc
            global_load_dword v31, v[2:3], off
            v_add_u32 v1, 0x8000, v1
            v_min_u32 v1, L_last-L_pc, v1
            v_mov_b32 v3, s75
            v_add_co_u32 v2, vcc, s74, v1
            v_addc_co_u32 v3, vcc, 0, v3, vcc
            global_load_dword v30, v[2:3], off
            """)
        self.lines(g, """
        v_lshrrev_b32 v1, 6, v0
        v_and_b32 v0, 63, v0
        v_readfirstlane_b32 s38, v1
        s_and_b32 s3, s3, 3
        s_lshl_b32 s3, s3, 1
        s_and_b32 s6, s4, 1
        s_or_b32 s3, s3, s6
        s_lshr_b32 s4, s4, 1
        s_and_b32 s6, s38, 1
        s_lshr_b32 s7, s38, 1
        s_mul_i32 s74, s6, %d
        s_lshl_b32 s75, s7, 12
        s_add_u32 s52, s74, s75
        s_mul_i32 s75, s7, 3072
        s_add_u32 s53, s74, s75
        s_mov_b32 s10, %d
        s_mov_b32 s11, 0x20000
        s_mov_b32 s14, 0x400000
        s_mov_b32 s15, 0x20000
        s_mov_b32 s40, %d
        s_mov_b32 s41, %d
        s_mov_b32 s42, %d
        s_mov_b32 s43, 15360
        s_mov_b32 s44, 30720
        """ % (HALF, 32 * 48 * 1024, 31744, 2 * 31744, 3 * 31744))
        self.lines(g, """
        v_lshrrev_b32 v1, 4, v0
        v_lshlrev_b32 v2, 2, v1
        v_and_b32 v3, 15, v0
        v_xor_b32 v2, v2, v3
        v_lshlrev_b32 v2, 4, v2
        v_lshl_add_u32 v2, v1, 13, v2
        s_lshl_b32 s74, s3, 2
        s_add_u32 s74, s74, s38
        s_lshl_b32 s74, s74, 8
        v_add_u32 v18, s74, v2
        s_lshl_b32 s74, s7, 2
        v_add_u32 v2, s74, v1
        v_and_b32 v3, 7, v0
        v_xor_b32 v28, v2, v3
        v_lshlrev_b32 v28, 4, v28
        v_lshrrev_b32 v27, 3, v0
        s_lshl_b32 s75, s4, 1
        s_add_u32 s75, s75, s6
        s_mul_i32 s74, s75, 6
        s_add_u32 s74, s74, s7
        s_lshl_b32 s74, s74, 13
        v_lshl_add_u32 v2, v27, 10, v28
        v_add_u32 v19, s74, v2
        s_waitcnt lgkmcnt(0)
        """)
        for it in self.dma_x(0) + self.dma_w(0) + self.dma_w(1) + self.dma_x(1) + self.dma_w(2) + self.dma_w(3):
            self.S.put(g, it)
        if o['touch']:
            self.lines(g, """
            s_lshl_b32 s74, s4, 2
            s_add_u32 s74, s74, s38
            s_lshl_b32 s74, s74, 6
            s_add_u32 s74, s74, s3
            s_lshl_b32 s74, s74, 10
            v_lshlrev_b32 v2, 7, v3
            v_lshl_add_u32 v2, v27, 13, v2
            buffer_load_dword v31, v2, s[12:15], s74 offen TP
            s_and_b32 s74, s3, 1
            s_lshl_b32 s55, s4, 1
            s_add_u32 s74, s74, s55
            s_lshl_b32 s74, s74, 2
            s_add_u32 s74, s74, s38
            s_mul_i32 s74, s74, 12288
            v_lshlrev_b32 v2, 7, v0
            buffer_load_dword v31, v2, s[8:11], s74 offen TP
            s_add_u32 s74, s74, 4096
            s_nop 0
            buffer_load_dword v31, v2, s[8:11], s74 offen TP
            """.replace(' TP', o['tp']))
        self.lines(g, """
        s_lshl_b32 s74, s75, 3
        s_add_u32 s74, s74, s3
        s_lshl_b32 s74, s74, 6
        s_add_u32 s74, s74, s7
        s_lshl_b32 s74, s74, 11
        v_lshl_add_u32 v2, v27, 8, v28
        v_add_u32 v20, s74, v2
        v_and_b32 v1, 1, v1
        v_lshlrev_b32 v1, 2, v1
        v_xor_b32 v2, v1, v3
        v_lshlrev_b32 v2, 4, v2
        v_lshl_add_u32 v2, v27, 8, v2
        v_add_u32 v21, s74, v2
        s_sub_u32 s16, s16, 1024
        s_subb_u32 s17, s17, 0
        s_mov_b32 s18, 0x2000400
        s_mov_b32 s19, 0x20000
        s_sub_u32 s20, s20, 1024
        s_subb_u32 s21, s21, 0
        s_mov_b32 s22, 0x2000400
        s_mov_b32 s23, 0x20000
        s_mov_b32 s45, 1024
        s_mov_b32 s46, 128
        s_mov_b32 s47, 3072
        s_mov_b32 s48, 2176
        s_mov_b32 s26, 0x400000
        s_mov_b32 s27, 0x20000
        s_mov_b32 s30, %d
        s_mov_b32 s31, 0x20000
        s_mov_b32 s34, 0x10000000
        s_mov_b32 s35, 0x20000
        s_mov_b32 s49, 7168
        s_mov_b32 s50, 14336
        s_mov_b32 s51, 21504
        s_mul_i32 s54, s7, %d
        s_lshl_b32 s74, s6, 12
        s_add_u32 s54, s54, s74
        s_mov_b32 s56, 0x%x
        s_mov_b32 s57, s56
        s_lshl_b32 s39, s5, 4
        s_add_u32 s39, s39, s4
        """ % (32 * 48 * 2048, HALF, f2u(128 ** -0.5 * 1.4426950408889634)))
        for j in range(8):
            self.lines(g, """
            s_add_u32 s74, s3, %d
            s_and_b32 s74, s74, 7
            s_add_u32 s75, s74, s4
            s_and_b32 s75, s75, 7
            s_lshl_b32 s%d, s75, 7
            s_lshl_b32 s75, s39, 3
            s_add_u32 s74, s74, s75
            s_mul_i32 s%d, s74, 98304
            """ % (j, S_PC + j, S_PD + j))
        self.lines(g, "s_lshl_b32 s39, s39, 2")
        self.lines(g, """
        v_bfe_u32 v1, v0, 2, 2
        v_mul_u32_u24 v2, 320, v1
        v_lshrrev_b32 v3, 5, v0
        v_lshl_add_u32 v2, v3, 11, v2
        v_bfe_u32 v27, v0, 4, 1
        v_lshl_add_u32 v2, v27, 5, v2
        v_and_b32 v28, 1, v0
        v_lshl_add_u32 v2, v28, 4, v2
        v_bfe_u32 v29, v0, 1, 1
        v_lshl_add_u32 v2, v29, 3, v2
        v_add_u32 v4, s52, v2
        v_xor_b32 v5, 64, v4
        v_xor_b32 v6, 128, v4
        v_xor_b32 v7, 192, v4
        """)
        self.lines(g, """
        v_lshl_add_u32 v2, v3, 2, v1
        v_lshlrev_b32 v2, 7, v2
        v_lshl_add_u32 v2, v27, 5, v2
        v_lshl_add_u32 v2, v29, 4, v2
        v_lshrrev_b32 v1, 1, v1
        v_lshl_add_u32 v2, v1, 6, v2
        v_lshl_add_u32 v2, v28, 3, v2
        s_mul_i32 s74, s6, %d
        s_add_u32 s75, s74, %d
        v_add_u32 v16, s75, v2
        v_xor_b32 v17, 64, v16
        """ % (HALF, 2 * U))
        self.lines(g, """
        v_bfe_u32 v1, v0, 1, 3
        v_xor_b32 v1, v1, v3
        v_lshlrev_b32 v1, 4, v1
        v_and_b32 v2, 7, v0
        v_lshl_add_u32 v1, v2, 7, v1
        v_bfe_u32 v2, v0, 3, 1
        v_lshl_add_u32 v28, v2, 12, v1
        v_lshl_add_u32 v28, v27, 11, v28
        v_add_u32 v12, s74, v28
        v_xor_b32 v13, 32, v12
        v_xor_b32 v14, 64, v12
        v_xor_b32 v15, 96, v12
        v_mul_u32_u24 v2, 3072, v2
        v_mul_u32_u24 v27, %d, v27
        v_add3_u32 v1, v1, v2, v27
        v_add_u32 v8, %d, v1
        v_xor_b32 v9, 32, v8
        v_xor_b32 v10, 64, v8
        v_xor_b32 v11, 96, v8
        v_lshlrev_b32 v1, 4, v0
        v_add_u32 v22, s52, v1
        v_and_b32 v1, 15, v0
        v_lshl_add_u32 v1, v1, 4, v27
        v_lshl_add_u32 v1, v3, 9, v1
        s_lshl_b32 s74, s7, 4
        s_add_u32 s74, s74, s6
        s_lshl_b32 s74, s74, 8
        v_add_u32 v23, s74, v1
        v_mov_b32 v24, 0
        v_mov_b32 v25, 0
        v_mov_b32 v26, 0
        """ % (HALF, 8 * U))

    def read_w(self, s, T):
        k, wb = self.wbuf[s]
        return [I("ds_read_b64_tr_b16 %s, v%d offset:%d" % (R(k, wb + 4 * T + 2 * v, 2), WA + T, (4 + s % 4) * U + 1024 * v),
                  lr=(4 + s % 4, ('w', s), True), vt=('w', s, T), tag='wr') for v in range(2)]

    def read_x(self, s, t):
        S = s >> 2
        return I("ds_read_b128 %s, v%d offset:%d" % (R('a', self.xbuf[s, t], 4), XA + (s & 3), (S % 2) * U + 1024 * t),
                 lr=(8 + S % 2, ('x', S), False), vt=('x', s, t), tag='xr')

    def q_epi(self, t):
        out = []
        for T in range(4):
            for jj in range(2):
                a = OB + 64 * t + 16 * T + 8 * jj
                s = 2 * T + jj
                for i in range(8):
                    out.append((T, I("v_mul_f32 v%d, s56, v%d" % (a + i, a + i), ex={2: ('qa', t, T, 31)}, vt='qs')))
                    if i & 1:
                        out.append((T, I("v_cvt_pk_bf16_f32 v%d, v%d, v%d" % (a + i // 2, a + i - 1, a + i), ex={1: 'qs', 2: 'qs'}, vt='qc')))
                u = 4 + 2 * (t & 1) + (s >> 2)
                out.append((T, I("ds_write_b128 v%d, %s offset:%d" % (LW, R('v', a, 4), u * U + (s & 3) * 1024),
                                 lw=(u, ('q', t), True), ex={1: 'qc'}, tag='qw')))
        return out

    def q_read(self, t):
        out = []
        for s in range(8):
            u = 4 + 2 * (t & 1) + (s >> 2)
            out.append(I("ds_read_b128 %s, v%d offset:%d" % (R('a', 32 * t + 4 * s, 4), QR, u * U + (s & 3) * 1024),
                         lr=(u, ('q', t), False), vt=('Q', t, s), tag='qr'))
        return out

    def phase1(self):
        S, o = self.S, self.o
        B = o['blk']
        order = [(s, T, t) for s in range(32 - B) for T in range(4) for t in range(3)]
        order += [(s, T, 0) for s in range(32 - B, 32) for T in range(4)]
        order += [(s, T, t) for t in (1, 2) for T in range(4) for s in range(32 - B, 32)]
        fuw, luw, fux, lux, self.qdone = {}, {}, {}, {}, {}
        for g, (s, T, t) in enumerate(order):
            fuw.setdefault(s, g)
            luw[s] = g
            fux.setdefault((s, t), g)
            lux[s, t] = g
            self.qdone[t, T] = g
        r31 = fuw[31] - 11
        rs = {s: min(fuw[s] - 11, 1 + (s - 1) * (r31 - 1) // 30) for s in range(1, 32)}
        rs[0] = -1
        pool = [('v', 32), ('v', 48), ('a', 32), ('a', 48), ('a', 0), ('a', 16)]
        nextocc = {p: 1 << 30 for p in pool}
        self.wbuf = {}
        for s in range(31, -1, -1):
            p = [p for p in pool if nextocc[p] > luw[s]][0]
            self.wbuf[s] = p
            nextocc[p] = rs[s]
        xfree = {64 + 4 * i: -2 for i in range(8)}
        self.xbuf, xr = {}, {}
        for s, t in sorted(fux, key=fux.get):
            r = min(xfree, key=xfree.get)
            xr[s, t] = max(fux[s, t] - 10, xfree[r] + 1, 48 * (s >> 2) - 11)
            assert s == 0 or xr[s, t] <= fux[s, t] - 4
            xfree[r] = lux[s, t]
            self.xbuf[s, t] = r
        S.put(-1, [WVM(('x', 0)), I("s_barrier")])
        self.stamp(-1, 'p1')
        S.put(-1, self.read_w(0, 0) + [self.read_x(0, t) for t in range(3)] + [self.read_w(0, T) for T in (1, 2, 3)])
        for s, T, t in order:
            d = R('v', OB + 64 * t + 16 * T, 16)
            ex = {1: ('w', s, T), 2: ('x', s, t)}
            if s:
                ex[3] = ('qa', t, T, s - 1)
            k, wb = self.wbuf[s]
            S.mfma(I("v_mfma_f32_32x32x16_bf16 %s, %s, %s, %s" % (d, R(k, wb + 4 * T, 4), R('a', self.xbuf[s, t], 4), d if s else '0'),
                     ex=ex, vt=('qa', t, T, s)))
        self.kfree, self.vfree = [0, 1], [2, 3]
        pend = []
        dms = []
        prer = []
        for s in range(32):
            g = 12 * s
            if s & 3 == 3 and s < 31:
                Sx = s >> 2
                tags = [('x', Sx + 1)] + [('h', i) for i in o['pre'].get(s, [])]
                S.put(g, [WVM(*tags), WLG('xr', 'hr'), I("s_barrier")])
                S.closed.add(g)
                for i in pend:
                    (self.vfree if i & 1 else self.kfree).append(self.hunit[i])
                pend = list(o['pre'].get(s, []))
                if Sx + 2 < 8:
                    dms.append((g + 1, g + 11, self.dma_x(Sx + 2)))
                else:
                    self.vfree.append(8 + Sx % 2)
                if pend:
                    prer.append((g + 1, min(g + 44, 383), [x for i in pend for x in self.read_h(i)]))
            dm = []
            for i in o['kviss'].get(s, []):
                dm += self.dma_h(i, (self.vfree if i & 1 else self.kfree).pop(0))
            if dm:
                dms.append((g + 1, g + 11, dm))
        for s in range(1, 32):
            S.spread([x for T in range(4) for x in self.read_w(s, T)], rs[s], rs[s] + 8, maxmem=2)
        for (s, t), g in xr.items():
            if s:
                S.spread([self.read_x(s, t)], g, fux[s, t] - 4)
        for s in range(28):
            g = max(rs[s] + 12, 1) if s else 1
            dms.append((g, g + 8, self.dma_w(s + 4)))
        dms.sort(key=lambda d: d[0])
        g = 0
        for g0, g1, dm in dms:
            for it in dm:
                g = max(g, g0)
                while g in S.closed:
                    g += 1
                S.put(g, it)
                g += o['dmagap']
            if flat_items(dm)[0].tag[0] == 'w':
                self.wlead = getattr(self, 'wlead', []) + [rs[flat_items(dm)[0].tag[1]] - g]
        print("w lead", self.wlead)
        for g0, g1, rd in prer:
            S.spread(rd, g0, g1, maxmem=2)
        self.pend = pend
        self.stamp(12 * 8, 'p1a')
        self.stamp(12 * 18, 'p1b')
        self.npre = sum(len(v) for v in o['pre'].values())
        self.nexth = sum(len(v) for v in o['kviss'].values())

    def qk(self, u, kbuf=None, tags=True):
        n, t = divmod(u, 3)
        i = 2 * n
        b = KVB + 32 * (i % 5) if kbuf is None else kbuf
        d = R('v', SB + 16 * (u & 1), 16)
        out = []
        for s in range(8):
            ex = {1: ('h', i, s), 2: ('Q', t, s)}
            if s:
                ex[3] = ('S', u, s - 1)
            out.append(I("v_mfma_f32_32x32x16_bf16 %s, %s, %s, %s" % (d, R('a', b + 4 * s, 4), R('a', 32 * t + 4 * s, 4), d if s else '0'),
                         ex=ex if tags else None, vt=('S', u, s)))
        return out

    def pv(self, u, vbuf=None, tags=True):
        n, t = divmod(u, 3)
        i = 2 * n + 1
        b = KVB + 32 * (i % 5) if vbuf is None else vbuf
        out = []
        for tt in range(2):
            for T in range(4):
                d = R('v', OB + 64 * t + 16 * T, 16)
                ex = {1: ('h', i, 4 * tt + T), 2: ('P', u)}
                first = n == 0 and tt == 0 and tags
                if not first:
                    ex[3] = ('O', t, T, 2 * n + tt - 1)
                out.append(I("v_mfma_f32_32x32x16_bf16 %s, %s, %s, %s" % (
                    d, R('a', b + 16 * tt + 4 * T, 4), R('v', SB + 16 * (u & 1) + 8 * tt, 4), '0' if first else d),
                    ex=ex if tags else None, vt=('O', t, T, 2 * n + tt)))
        return out

    def softmax(self, u, tags=True):
        t = u % 3
        sb = SB + 16 * (u & 1)
        out = []
        for i in range(17):
            grp = []
            if i < 16:
                grp.append(I("v_exp_f32 v%d, v%d" % (sb + i, sb + i), ex={1: ('S', u, 7)} if tags else None, vt=('E', u)))
            if i:
                k = i - 1
                grp.append(I("v_add_f32 v%d, v%d, v%d" % (L0 + t, L0 + t, sb + k), ex={2: ('E', u)}))
                if k & 1:
                    grp.append(I("v_cvt_pk_bf16_f32 v%d, v%d, v%d" % (sb + (k & 8) + (k & 7) // 2, sb + k - 1, sb + k),
                                 ex={1: ('E', u), 2: ('E', u)}, vt=('P', u)))
            out.append(grp)
        return out

    def issue_kv(self, g0, g1, cap=2):
        dm = []
        while self.nexth < 32 and cap:
            fl = self.vfree if self.nexth & 1 else self.kfree
            if not fl:
                break
            dm += self.dma_h(self.nexth, fl.pop(0))
            self.nexth += 1
            cap -= 1
        if self.nexth == 32:
            while cap and len(self.wounit) < self.o['nearly']:
                c = [x for x in self.vfree + self.kfree if x >= 2 and x not in self.ounits]
                if not c:
                    break
                (self.vfree if c[0] in self.vfree else self.kfree).remove(c[0])
                dm += self.dma_wo(len(self.wounit), c[0])
                cap -= 1
        if dm:
            self.S.spread(dm, g0, g1)

    def free_h(self, lst):
        for i in lst:
            (self.vfree if i & 1 else self.kfree).append(self.hunit[i])

    def stream(self, seq, g, lim, lo=None):
        S = self.S
        for k, it in enumerate(seq):
            g = max(g, (lo or {}).get(k, g))
            while g < lim and not S.fits(g, it, 0):
                g += 1
            if g >= lim:
                S.put(lim, self.packed(seq[k:]))
                return lim
            S.put(g, it)
        return g

    def packed(self, seq):
        out = []
        k = 0
        while k < len(seq):
            a = seq[k]
            if a.kind == 'valu' and a.op == 'v_mul_f32' and k + 1 < len(seq) and seq[k + 1].text.startswith('v_mul_f32'):
                r = int(a.ops[0][0][1:])
                m = a.ops[1][0]
                assert r % 2 == 0 and seq[k + 1].ops[0][0] == 'v%d' % (r + 1)
                mi = int(m[1:])
                sel = " op_sel:[0,%d] op_sel_hi:[1,%d]" % (mi & 1, mi & 1)
                out.append(I("v_pk_mul_f32 %s, %s, %s%s" % (R('v', r, 2), R('v', r, 2), R(m[0], mi & ~1, 2), sel), ex={1: a.ex[2]}, vt=a.vt))
                k += 2
            else:
                out.append(a)
                k += 1
        return out

    def w0(self, txt):
        self.nw0 = getattr(self, 'nw0', 0) + 1
        return self.raw("s_cmp_lg_u32 s38, 0\ns_cbranch_scc1 L_w0_%d\n%s\nL_w0_%d:" % (self.nw0, txt, self.nw0))

    def phase2(self):
        S, o = self.S, self.o
        self.wounit = {}
        self.ounits = o.get('ounits', [0, 1, 5, 6])
        last1 = S.n() - 1
        q, pv = {}, {}
        for u in range(49):
            if u < 48:
                q[u] = S.n()
                for m in self.qk(u):
                    S.mfma(m)
            if u:
                pv[u - 1] = S.n()
                for m in self.pv(u - 1):
                    S.mfma(m)
        self.q, self.pvp = q, pv

        def sm(u):
            seq = flat_items(self.softmax(u))
            half = [k for k, x in enumerate(seq) if x.op.startswith('v_cvt')][3]
            end = pv[u] + 2 if u in (0, 47) else q[u] + 24
            S.fill(seq, q[u] + 9, end, hi={half: pv[u] - 2})
        self.stamp(last1, 'p2')
        sm(0)
        sm(1)
        g = 0
        read = list(range(self.npre))
        lims = [last1 - 2, q[1] - 3, q[2] - 3]
        for t in range(3):
            e = self.q_epi(t)
            g = self.stream([x for _, x in e], g, lims[t], {k: self.qdone[t, T] + 2 for k, (T, _) in enumerate(e)})
            gb = min(g + 2, lims[t])
            want = [i for i in o['qpre'].get(t, []) if i not in read]
            bar = [WVM(*[('h', i) for i in want]), WLG('*'), I("s_barrier")]
            for x in bar:
                x.pin = True
            S.put(gb, bar)
            S.closed.add(gb)
            if gb == lims[t]:
                S.put(gb, self.q_read(t))
            else:
                S.spread(self.q_read(t), max(gb + 1, last1 if t else 0), lims[t], dense=True, maxmem=2)
            self.free_h(self.pend)
            self.pend = want
            read += want
            if t == 1:
                self.vfree.append(9)
            if t == 2:
                self.kfree += [6, 7]
            for i in want:
                S.spread(self.read_h(i), gb + 1, gb + 16, maxmem=2)
            self.issue_kv(gb + 1, gb + 10)
            print("q tile", t, "epilogue ends", g - last1, "barrier", gb - last1)
        freed = set(read) - set(self.pend)
        for n in range(16):
            g = q[3 * n + 2] + 6
            want = [i for i in (2 * n + 2, 2 * n + 3) if i < 32 and i not in read]
            S.put(g, [WVM(*[('h', i) for i in want]), WLG('hr', 'qr'), I("s_barrier")])
            S.closed.add(g)
            if n == 0:
                self.kfree.append(4)
                self.vfree.append(5)
            self.free_h([i for i in read if i not in freed])
            freed |= set(read)
            for i in want:
                if i & 1:
                    S.spread(self.read_h(i), g + 9, g + 31)
                else:
                    S.spread(self.read_h(i), g + 1, g + 8)
            read += want
            self.issue_kv(g + 1, min(g + 46, S.n() - 1), cap=3)
            if n == 1:
                S.put(g + 47, self.w0("buffer_store_dword v30, v29, s[32:35], s66 offen sc1"))
            if n == 6:
                S.put(g + 47, self.w0("s_mov_b64 exec, 1\nglobal_atomic_add v28, v11, s[36:37] sc1\ns_mov_b64 exec, -1"))
            if n == o['wotouch']:
                S.put(g + 47, I("buffer_load_dword v31, v27, s[24:27], 0 offen" + o['tp']))
            if n == 12:
                S.put(g + 47, I("global_load_dword v29, v28, s[36:37] sc1"))
        for u in range(2, 48):
            sm(u)
        self.p3_setup(q[2] + 8, q[5] + 40)
        self.stamp(q[9], 'p2a')
        self.stamp(q[39], 'p2b')
        print("h units", self.hunit, "early wo", self.wounit)

    def p3_setup(self, g0, g1):
        txt = """
        v_bfe_u32 v1, v0, 4, 1
        v_bfe_u32 v2, v0, 2, 2
        v_lshrrev_b32 v3, 5, v0
        v_lshl_add_u32 v3, v3, 2, v2
        v_lshlrev_b32 v3, 7, v3
        v_lshl_add_u32 v3, v1, 12, v3
        v_lshrrev_b32 v2, 1, v2
        v_lshl_add_u32 v2, v1, 1, v2
        s_lshl_b32 s74, s7, 1
        v_xor_b32 v2, s74, v2
        v_lshl_add_u32 v3, v2, 5, v3
        v_and_b32 v2, 3, v0
        v_lshl_add_u32 v3, v2, 3, v3
        s_mul_i32 s74, s7, %d
        s_add_u32 s75, s74, %d
        v_add_u32 v4, s75, v3
        v_xor_b32 v5, 32, v4
        s_sub_u32 s75, %d, s74
        v_add_u32 v6, s75, v3
        v_xor_b32 v7, 32, v6
        s_lshl_b32 s74, s6, 2
        v_lshl_add_u32 v1, v1, 1, s74
        v_and_b32 v2, 7, v0
        v_xor_b32 v1, v1, v2
        v_lshlrev_b32 v1, 4, v1
        v_lshrrev_b32 v2, 3, v0
        v_lshl_add_u32 v1, v2, 10, v1
        s_lshl_b32 s74, s3, 2
        s_add_u32 s74, s74, s38
        s_lshl_b32 s74, s74, 17
        v_add_u32 v19, s74, v1
        v_xor_b32 v23, 0x1000, v22
        v_mov_b32 v28, s39
        s_mul_i32 s74, s38, 3072
        v_mov_b32 v9, s74
        v_lshl_add_u32 v8, v0, 4, v9
        v_lshl_add_u32 v10, v2, 2, v9
        v_mov_b32 v11, 1
        v_lshrrev_b32 v1, 4, v0
        v_mul_u32_u24 v1, 3072, v1
        v_and_b32 v2, 15, v0
        v_lshl_add_u32 v29, v2, 2, v1
        v_mov_b32 v30, 0
        s_lshl_b32 s74, s3, 4
        s_add_u32 s74, s74, s4
        s_lshl_b32 s74, s74, 2
        s_add_u32 s74, s74, s38
        s_lshl_b32 s74, s74, 13
        v_lshl_add_u32 v27, v0, 7, s74
        """ % (HALF, 2 * U, HALF + 2 * U)
        self.S.spread([I(l.strip()) for l in txt.strip().split("\n")], g0, g1)

    def dma_wo(self, z, unit):
        self.wounit[z] = unit
        out = self.dma_group(VWQ, sWO, ['0', 's49', 's50', 's51'], S_LBO, unit, ('wo', z), False, self.o['wop'],
                             0x8000 if z & 3 != 3 else 0)
        if z & 3 == 0:
            out[0] = [I("v_add_u32 v%d, s%d, v%d" % (VWQ, S_PC + ((z >> 2) + 1) % 8, VX)), out[0]]
        return out

    def lsum(self):
        out = []
        for t in range(3):
            out.append(I("v_mov_b32 v%d, v%d" % (1 + t, L0 + t)))
        for t in range(3):
            out.append(I("v_permlane32_swap_b32 v%d, v%d" % (1 + t, L0 + t)))
        for t in range(3):
            out.append(I("v_add_f32 v%d, v%d, v%d" % (L0 + t, L0 + t, 1 + t)))
        return out

    def o_norm(self, t, ks):
        out = []
        a = OB + 64 * t + 8 * ks
        for i in range(8):
            out.append(I("v_mul_f32 v%d, v%d, v%d" % (a + i, L0 + t, a + i), ex={2: ('O', t, ks >> 1, 31)}, vt='os'))
            if i & 1:
                out.append(I("v_cvt_pk_bf16_f32 v%d, v%d, v%d" % (a + i // 2, a + i - 1, a + i), ex={1: 'os', 2: 'os'}, vt=('of', 0, t, ks)))
        return out

    def o_loc(self, f):
        r = f >> 3
        u = self.ounits[2 * (r & 1) + ((f >> 2) & 1)]
        return r, u, u * U + (f & 3) * 1024

    def o_write(self, f):
        ks, t = divmod(f, 3)
        r, u, off = self.o_loc(f)
        return I("ds_write_b128 v%d, %s offset:%d" % (LW, R('v', OB + 64 * t + 8 * ks, 4), off),
                 lw=(u, ('o', r), False), ex={1: ('of', 0, t, ks)}, tag='ow')

    def o_read(self, f):
        ks, t = divmod(f, 3)
        r, u, off = self.o_loc(f)
        return I("ds_read_b128 %s, v%d offset:%d" % (R('a', 32 * t + 4 * ks, 4), QR, off),
                 lr=(u, ('o', r), False), vt=('of', 1, t, ks), tag='or')

    def acc(self, jj, t, i):
        return OB + 64 * t + 8 * (2 * (jj & 1) + i) + 4

    def phase3(self):
        S, o = self.S, self.o
        g = S.n() - 1
        LEAD = 6
        S.put(g - 3, [WVM(*[('wo', z) for z in range(4)]), I("s_barrier")])
        S.closed.add(g - 3)
        pre = self.lsum() + [I(l.strip()) for l in ("""
        v_min3_f32 v1, v24, v25, v26
        v_max3_f32 v2, v24, v25, v26
        v_cmp_gt_f32 vcc, 0x%x, v1
        s_mov_b64 s[74:75], vcc
        v_cmp_lt_f32 vcc, 0x%x, v2
        """ % (f2u(2.0 ** -30), f2u(2.0 ** 30))).strip().split("\n")]
        for x in pre:
            x.pin = True
        self.stream(pre, g - 4, g)
        self.stamp(g, 'oepi')
        self.lines(g, """
        s_or_b64 s[74:75], s[74:75], vcc
        %s L_slow
        L_join:
        v_rcp_f32 v24, v24
        v_rcp_f32 v25, v25
        v_rcp_f32 v26, v26
        """ % ('s_branch' if o['force_slow'] else 's_cbranch_scc1'))
        self.g_oepi = g
        fr = []
        for jj in range(8):
            if jj == 0:
                fr += [(jj, sd, ks, i) for sd in range(2) for ks in range(8) for i in range(2)]
            else:
                fr += [(jj, sd, 2 * sl + k2, i) for sl in range(4) for sd in range(2) for k2 in range(2) for i in range(2)]
        p3 = S.n()
        cnt = {}
        for f, (jj, sd, ks, i) in enumerate(fr):
            for t in range(3):
                d = R('v', self.acc(jj, t, i), 4)
                c = cnt.get((jj, t, i), 0)
                cnt[(jj, t, i)] = c + 1
                bop = R('v', OB + 64 * t + 8 * ks, 4) if sd == 0 else R('a', 32 * t + 4 * ks, 4)
                ex = {1: ('wf', f), 2: ('of', sd, t, ks)}
                if c:
                    ex[3] = ('pa', jj, t, i, c - 1)
                S.mfma(I("v_mfma_f32_16x16x32_bf16 %s, %s, %s, %s" % (d, R('v', SB + 4 * (f % 8), 4), bop, d if c else '0'),
                         ex=ex, vt=('pa', jj, t, i, c)))
        lastuse = {}
        for f, (jj, sd, ks, i) in enumerate(fr):
            lastuse[4 * jj + ks // 2] = f

        def wread(f, uu):
            jj, sd, ks, i = fr[f]
            z = 4 * jj + ks // 2
            return I("ds_read_b64_tr_b16 %s, v%d offset:%d" % (
                R('v', SB + 4 * (f % 8) + 2 * uu, 2), WA + 2 * sd + i, (self.wounit[z] - 2) * U + (2 * (ks & 1) + uu) * 1024),
                lr=(self.wounit[z], ('wo', z), False), vt=('wf', f), tag='wf')
        nx = o['oexp']
        S.put(g, [wread(f, uu) for f in range(LEAD) for uu in range(2)])
        wr = 0
        for ks in range(nx):
            for t in range(3):
                S.put(g, self.packed(self.o_norm(t, ks)))
            if ks and wr < o['owexp']:
                S.put(g, self.o_write(wr))
                wr += 1
        self.stamp(g, 'p3')
        bars = {}
        gg = p3 + 2
        for f in range(wr, 24):
            S.put(gg, self.o_write(f))
            S.closed.add(gg)
            gg += 3
            if f & 7 == 7:
                bars[gg] = f >> 3
                gg += 3
        merged = None
        for f in range(32, len(fr), 16):
            gg = p3 + 3 * (f - LEAD) - 1
            near = [x for x in bars if bars[x] is not None and gg - 12 <= x <= gg + 3]
            if near and f == 32:
                assert near[0] <= gg
                merged = near[0]
            else:
                bars[gg] = None
        free = [x for x in range(2, 10) if x not in self.wounit.values() and x not in self.ounits]
        nz = len(self.wounit)
        released = set()
        rdone = []
        gl = sorted(bars)
        dms = []
        for k, gg in enumerate(gl):
            r = bars[gg]
            seq = [WLG('ow', 'or')]
            if r is None or gg == merged:
                f = 32 if gg == merged else (gg + 1 - p3) // 3 + LEAD
                z = f // 8
                seq = [WVM(('wo', z), ('wo', z + 1))] + seq
            S.put(gg, seq + [I("s_barrier")])
            S.closed.add(gg)
            for z0 in range(32):
                if z0 not in released and z0 in self.wounit and p3 + 3 * lastuse[z0] <= gg:
                    released.add(z0)
                    free.append(self.wounit[z0])
            for r0 in rdone:
                if r0 >= 1:
                    free += [x for x in self.ounits[2 * (r0 & 1):2 * (r0 & 1) + 2] if x >= 2]
            rdone = [r] if r is not None else []
            dm = []
            while free and nz < 32:
                dm += self.dma_wo(nz, free.pop(0))
                nz += 1
            nxt = gl[k + 1] if k + 1 < len(gl) else S.n() - 1
            dms.append((r, dm, gg + 1, nxt - 1))
        for f in range(LEAD, len(fr)):
            for uu in range(2):
                S.put(p3 + 3 * (f - LEAD) + uu, wread(f, uu))
        for r, dm, g0, g1 in dms:
            if r is not None:
                S.spread([self.o_read(f) for f in range(8 * r, 8 * r + 8)], g0, min(g1, g0 + 12), maxmem=2, dense=True)
            if dm:
                S.spread(dm, g0, min(g1, g0 + 40))
        for ks in range(nx, 8):
            assert 0
        print("p3 barriers", [x - p3 for x in gl], "wo units", self.wounit)
        self.stamp(p3 + 192, 'p3a')
        self.stamp(p3 + 192 + 384, 'p3b')
        S.put(p3 + 60, [I("v_readfirstlane_b32 s55, v29"), I("s_cmp_ge_u32 s55, 8"), I("s_cbranch_scc0 L_cwait"), I("L_cok:")])
        for jj in range(7):
            e = p3 + 96 * (jj + 1)
            seq = [I("v_add_u32 v8, 12288, v8")]
            for t in range(3):
                qd = OB + 64 * t + 8 * 4 + 4
                for i in range(2):
                    a = self.acc(jj, t, i)
                    for k in range(2):
                        seq.append(I("v_cvt_pk_bf16_f32 v%d, v%d, v%d" % (qd + 2 * i + k, a + 2 * k, a + 2 * k + 1),
                                     ex={1: ('pa', jj, t, i, 15), 2: ('pa', jj, t, i, 15)}, vt='pub'))
                seq.append(I("buffer_store_dwordx4 %s, v8, s[32:35], s%d offen offset:%d sc1" % (R('v', qd, 4), S_PD + jj + 1, 1024 * t),
                             tag=('pub', jj)))
            S.spread(seq, e + 2, e + 26, dense=True)
            seq = [WVM(('pub', jj)), I("s_mov_b64 exec, 1"),
                   I("buffer_store_dword v11, v9, s[32:35], s%d offen offset:%d sc1" % (S_PD + jj + 1, 4 * (jj + 1))),
                   I("s_mov_b64 exec, -1")]
            S.put(e + o.get('flagdelay', 70), seq)
        txt = """
        v_mov_b32 v12, 0
        v_mov_b32 v13, 0
        v_mov_b32 v16, 0
        v_mov_b32 v17, 0
        v_and_b32 v1, 1, v0
        v_lshlrev_b32 v1, 4, v1
        v_mov_b32 v2, 0x3f80
        v_lshlrev_b32 v1, v1, v2
        v_bfe_u32 v2, v0, 1, 3
        v_lshrrev_b32 v3, 4, v0
        v_lshlrev_b32 v3, 1, v3
        v_cmp_eq_u32 vcc, v2, v3
        v_cndmask_b32 v14, v12, v1, vcc
        v_add_u32 v3, 1, v3
        v_cmp_eq_u32 vcc, v2, v3
        v_cndmask_b32 v15, v12, v1, vcc
        v_and_b32 v1, 15, v0
        v_lshlrev_b32 v1, 11, v1
        v_lshrrev_b32 v2, 4, v0
        v_lshl_add_u32 v20, v2, 3, v1
        s_lshl_b32 s74, s4, 1
        s_add_u32 s74, s74, s6
        s_mul_i32 s74, s74, %d
        s_lshl_b32 s75, s5, 10
        s_add_u32 s74, s74, s75
        s_lshl_b32 s75, s7, 6
        s_add_u32 s74, s74, s75
        s_add_u32 s40, s74, s58
        s_add_u32 s41, s40, 0x8000
        s_add_u32 s42, s40, 0x10000
        v_lshl_add_u32 v21, v0, 4, v9
        """ % (48 * 2048)
        S.spread([I(l.strip()) for l in txt.strip().split("\n")], p3 + 130, p3 + 600)
        g = S.n() - 1
        self.stamp(g, 'tail')
        self.lines(g, "s_mov_b32 s55, 0")
        S.put(g, self.raw("""
        L_poll:
        buffer_load_dword v1, v10, s[32:35], s66 offen sc1
        s_waitcnt vmcnt(0)
        v_cmp_ne_u32 vcc, 1, v1
        s_add_u32 s55, s55, 1
        s_cmp_gt_u32 s55, %d
        s_cbranch_scc1 L_pok
        s_lshr_b64 s[74:75], vcc, 8
        s_cbranch_scc1 L_poll
        L_pok:
        """ % o['spin']) + [RESET()])
        self.stamp(g, 'got')
        for j in range(1, 8):
            S.put(g, I("s_add_u32 s66, s66, 12288"))
            for t in range(3):
                S.put(g, I("buffer_load_dwordx4 %s, v21, s[32:35], s66 offen offset:%d sc1" % (R('a', 96 + 12 * (j - 1) + 4 * t, 4), 1024 * t)))
        for j in range(1, 8):
            for t in range(3):
                for i in range(2):
                    d = R('v', self.acc(7, t, i), 4)
                    S.mfma(I("v_mfma_f32_16x16x32_bf16 %s, %s, %s, %s" % (d, R('v', 14 - 2 * i, 4), R('a', 96 + 12 * (j - 1) + 4 * t, 4), d)))
        g = S.n() - 1
        for t in range(3):
            for i in range(2):
                a = self.acc(7, t, i)
                for k in range(2):
                    S.put(g, I("v_cvt_pk_bf16_f32 v%d, v%d, v%d" % (a + k, a + 2 * k, a + 2 * k + 1)))
                S.put(g, I("buffer_store_dwordx2 %s, v20, s[28:31], s%d offen offset:%d" % (R('v', a, 2), 40 + t, 32 * i)))
        self.stamp(g, 'end')

    def slow(self):
        P = []

        def L(txt):
            for l in txt.strip().split("\n"):
                if l.strip():
                    P.append(I(l.strip()))
        ua, ub = self.ounits[2], self.ounits[3]
        assert ua >= 2 and ub >= 2
        kb, vb = 160, 192
        M = SB + 16
        L("""
        L_cwait:
        s_mov_b32 s74, 0
        L_cw1:
        global_load_dword v29, v28, s[36:37] sc1
        s_waitcnt vmcnt(0)
        v_readfirstlane_b32 s55, v29
        s_add_u32 s74, s74, 1
        s_cmp_gt_u32 s74, %d
        s_cbranch_scc1 L_cok
        s_cmp_ge_u32 s55, 8
        s_cbranch_scc0 L_cw1
        s_branch L_cok
        L_slow:
        s_nop 7
        s_nop 7
        s_waitcnt vmcnt(0) lgkmcnt(0)
        s_lshl_b32 s74, s4, 1
        s_add_u32 s74, s74, s6
        s_lshl_b32 s74, s74, 3
        s_add_u32 s74, s74, s3
        s_lshl_b32 s74, s74, 17
        s_add_u32 s74, s74, 1024
        v_and_b32 v1, 31, v0
        v_lshlrev_b32 v1, 8, v1
        v_lshrrev_b32 v2, 5, v0
        v_lshl_add_u32 v1, v2, 4, v1
        v_add_u32 v52, s74, v1
        s_lshl_b32 s74, s7, 11
        s_add_u32 s74, s74, 0x20000
        v_subrev_u32 v53, s74, v21
        v_add_u32 v54, 2048, v53
        s_lshl_b32 s74, s7, 12
        v_add_u32 v55, s74, v16
        v_add_u32 v56, s74, v17
        v_mov_b32 v48, 0xff800000
        v_mov_b32 v49, 0xff800000
        v_mov_b32 v50, 0xff800000
        s_mov_b32 s75, 0
        L_s1:
        """ % self.o['spin'])

        def kload():
            for s in range(8):
                L("buffer_load_dwordx4 %s, v52, s[16:19], s75 offen offset:%d" % (R('a', kb + 4 * s, 4), 32 * s))
        kload()
        for t in range(3):
            P.extend(self.qk(4 * t, kb, tags=False))
            for i in range(8):
                L("v_max3_f32 v%d, v%d, v%d, v%d" % (M + t, M + t, SB + 2 * i, SB + 2 * i + 1))
        L("""
        s_add_u32 s75, s75, 8192
        s_cmp_lt_u32 s75, 0x20000
        s_cbranch_scc1 L_s1
        """)
        for t in range(3):
            L("v_mov_b32 v1, v%d\n v_permlane32_swap_b32 v1, v%d\n v_max_f32 v%d, v%d, v1\n v_mov_b32 v%d, 0" % (M + t, M + t, M + t, M + t, L0 + t))
        for r in range(OB, 256):
            L("v_mov_b32 v%d, 0" % r)
        L("s_mov_b32 s75, 0\n L_s2:")
        kload()
        for uu, un in enumerate((ua, ub)):
            L("s_add_u32 m0, s52, %d" % (un * U))
            for j in range(4):
                L("buffer_load_dwordx4 v%d, s[20:23], s%d offen offset:%d lds" % (53 + uu, 45 + j, 1024 * j))
        L("v_add_u32 v53, 8192, v53\n v_add_u32 v54, 8192, v54\n s_waitcnt vmcnt(0)")
        for tt in range(2):
            for T in range(4):
                for uu in range(2):
                    L("ds_read_b64_tr_b16 %s, v%d offset:%d" % (R('a', vb + 16 * tt + 4 * T + 2 * uu, 2), 55 + (T & 1),
                                                              ((ua, ub)[uu] - 2) * U + (2 * tt + (T >> 1)) * 1024))
        L("s_waitcnt lgkmcnt(0)")
        for t in range(3):
            P.extend(self.qk(4 * t, kb, tags=False))
            for i in range(16):
                L("v_sub_f32 v%d, v%d, v%d" % (SB + i, SB + i, M + t))
            for grp in self.softmax(4 * t, tags=False):
                P.extend(grp)
            P.extend(self.pv(4 * t, vb, tags=False))
        L("""
        s_add_u32 s75, s75, 8192
        s_cmp_lt_u32 s75, 0x20000
        s_cbranch_scc1 L_s2
        s_nop 7
        s_nop 7
        """)
        P.extend(self.lsum())
        L("s_branch L_join")
        return P

    def fix_m0(self, prog):
        out = []
        cur = None
        for ins in prog:
            if ins.kind == 'label' and ins.text.startswith('L_join'):
                cur = None
            if ins.kind == 'dma' and ins.m0 != cur:
                cur = ins.m0
                m = I("s_add_u32 m0, s%d, %d" % cur)
                k = len(out)
                while k and out[k - 1].kind in ('dsr', 'waitvm', 'waitlg', 'comment'):
                    k -= 1
                if out[k - 1].kind == 'mfma' and k == len(out):
                    k -= 1
                    while k and out[k - 1].kind in VAL:
                        k -= 1
                elif k == len(out) and out[k - 1].kind in VAL:
                    k -= 1
                out.insert(k, m)
            out.append(ins)
        return out

    def build(self):
        self.prologue()
        self.phase1()
        self.phase2()
        self.phase3()
        for nm in self.o['stamps']:
            if nm[0] == 'g' and nm[1:].isdigit():
                self.stamp(int(nm[1:]), nm)
        main = self.fix_m0(self.S.linear())
        if self.nstamp:
            n = self.nstamp
            txt = """
            s_waitcnt lgkmcnt(0)
            s_cmp_eq_u32 s38, 0
            s_cbranch_scc0 L_end
            s_mul_i32 s74, s2, %d
            s_add_u32 s74, s74, %d
            v_mov_b32 v3, s74
            """ % (16 * n, 200 << 20)
            for i in range(n):
                for j in range(4):
                    txt += "v_mov_b32 v%d, s%d\n" % (4 + j, S_STAMP + 4 * i + j)
                txt += "buffer_store_dwordx4 v[4:7], v3, s[32:35], 0 offen offset:%d\n" % (16 * i)
            main += [I(l.strip()) for l in txt.strip().split("\n") if l.strip()]
        main += [I("L_end:"), I("s_endpgm")]
        zr = {'x': ['s10'], 'wq': ['s14'], 'kv': ['s18', 's22'], 'wo': ['s26']}
        for z in self.o.get('zero', ()):
            for r in zr[z]:
                for k, ins in enumerate(main):
                    if ins.text.startswith('s_mov_b32 %s,' % r):
                        main[k] = I('s_mov_b32 %s, 0' % r)
        main, n1 = insert_nops(insert_waits(main, lgage=self.o['lgage']))
        if self.o.get('strip'):
            on, out = False, []
            for ins in main:
                if ins.kind == 'comment' and '@p1' in ins.text:
                    on = True
                if ins.kind == 'comment' and '@tail' in ins.text:
                    on = False
                if on and (ins.text.startswith(tuple(self.o['strip'])) or (ins.kind == 'dma' and 'dma' in self.o['strip'])):
                    continue
                out.append(ins)
            main = out
        slow, n2 = insert_nops(insert_waits(self.slow()), timed=False)
        est = estimate(main)
        print("nops", n1, "instr", len(main), "est:", " ".join("%s:%d/%d" % e for e in est), "total", sum(e[1] for e in est))
        K = NAME + "_kernel"
        return (header([(None, 256, 256, 163840)]) + kernel_start(K) + text_of(main) + text_of(slow) +
                "L_last:\n    s_endpgm\n" + RODATA + descriptor(K, 512, 256))


def gen(path, **kw):
    open(path, "w").write(Gen(**kw).build())


if __name__ == "__main__":
    gen("v1.s")
    gen("v1_slow.s", force_slow=1)
    gen("v1_st.s", stamps=('start', 'p1', 'p2', 'oepi', 'tail', 'end'))
```

```python
import re

REG = re.compile(r'^(-?)([vas])(?:(\d+)|\[(\d+):(\d+)\])$')
TRANS = ('v_exp_f32', 'v_rcp_f32', 'v_log_f32', 'v_rsq_f32', 'v_sqrt_f32')


def regs_of(tok):
    tok = tok.strip()
    if tok in ('vcc', 'm0', 'exec'):
        return [tok]
    m = REG.match(tok)
    if not m:
        return []
    k = m.group(2)
    if m.group(3) is not None:
        return [k + m.group(3)]
    return [k + str(i) for i in range(int(m.group(4)), int(m.group(5)) + 1)]


def R(k, a, n=1):
    return "%s%d" % (k, a) if n == 1 else "%s[%d:%d]" % (k, a, a + n - 1)


class I:
    def __init__(self, text, **kw):
        self.text = text
        self.tag = kw.get('tag')
        self.lr = kw.get('lr')
        self.lw = kw.get('lw')
        self.vt = kw.get('vt')
        self.ex = kw.get('ex')
        self.cost = kw.get('cost')
        self.kind = kw.get('kind')
        self.rd, self.wr, self.ops = [], [], []
        if self.kind is None:
            self.parse()
        if self.cost is None:
            self.cost = {'trans': 8, 'label': 0, 'comment': 0, 'reset': 0, 'bar': 26}.get(self.kind, 4)
            if self.kind == 'dsw' and self.op == 'ds_write_b128':
                self.cost = 20

    def parse(self):
        t = self.text.split(';')[0].strip()
        if t.endswith(':'):
            self.kind = 'label'
            return
        sp = t.split(None, 1)
        op = self.op = sp[0]
        ops = []
        mods = ''
        if len(sp) > 1:
            parts = sp[1].split(',')
            last = parts[-1].strip().split(None, 1)
            parts[-1] = last[0]
            mods = last[1] if len(last) > 1 else ''
            ops = [regs_of(p) for p in parts]
        self.ops = ops
        flat = lambda l: [r for x in l for r in x]
        if op.startswith('v_mfma'):
            self.kind = 'mfma'
            self.passes = 8 if '32x32' in op else 4
            self.wr, self.rd = ops[0], flat(ops[1:])
        elif op.startswith('ds_read'):
            self.kind, self.wr, self.rd = 'dsr', ops[0], flat(ops[1:])
        elif op.startswith('ds_write'):
            self.kind, self.rd = 'dsw', flat(ops)
        elif op.startswith(('buffer_load', 'global_load')):
            if re.search(r'\blds\b', mods):
                self.kind, self.rd = 'dma', flat(ops) + ['m0']
            else:
                self.kind, self.wr, self.rd = 'vld', ops[0], flat(ops[1:])
        elif op.startswith(('buffer_store', 'global_store', 'buffer_atomic', 'global_atomic')):
            self.kind, self.rd = 'vst', flat(ops)
            d = ops[0] if op.startswith('buffer') else ops[1]
            self.wide = d if len(d) > 2 else []
        elif op.startswith('v_permlane'):
            self.kind, self.wr, self.rd = 'perm', flat(ops), flat(ops)
        elif op.startswith('v_'):
            self.kind = 'trans' if op in TRANS else 'valu'
            self.wr, self.rd = list(ops[0]), flat(ops[1:])
            if op.startswith(('v_add_co', 'v_addc_co')):
                self.wr = ops[0] + ops[1]
                self.rd = flat(ops[2:])
        elif op == 's_barrier':
            self.kind = 'bar'
        elif op == 's_waitcnt':
            self.kind = 'wait'
        elif op == 's_nop':
            self.kind = 'nop'
            self.n = int(sp[1]) + 1
        elif op.startswith(('s_load', 's_memtime', 's_memrealtime')):
            self.kind, self.wr, self.rd = 'smem', ops[0], flat(ops[1:])
        elif op.startswith(('s_cmp', 's_bitcmp', 's_cbranch', 's_branch', 's_endpgm', 's_setprio', 's_sleep')):
            self.kind, self.rd = 'salu', flat(ops)
        elif op.startswith('s_'):
            self.kind, self.wr, self.rd = 'salu', ops[0], flat(ops[1:])
        else:
            raise ValueError("unknown op " + t)


def WVM(*tags):
    return I("; waitvm", kind='waitvm', tag=tags)


def WLG(*tags):
    return I("; waitlg", kind='waitlg', tag=tags)


def RESET():
    return I("; reset", kind='reset')


def CMT(s):
    return I("; " + s, kind='comment')


VAL = ('valu', 'trans', 'perm')
MEM = ('dsr', 'dsw', 'dma', 'vld', 'vst')
FREE = ('label', 'comment', 'reset')


class Clock:
    def __init__(self):
        self.ts = self.tv = self.tm = self.mf = 0

    def step(self, ins):
        k = ins.kind
        if k in FREE:
            return self.ts
        if k == 'mfma':
            t = max(self.ts, self.tv, self.mf)
            self.mf = t + 4 * ins.passes
            self.ts, self.tv, self.tm = t + 4, t + 8, t + 4
        elif k in VAL:
            t = max(self.ts, self.tv)
            d = ins.cost
            self.ts, self.tv, self.tm = t + d, t + d, t + d + 4
        elif k in MEM:
            t = max(self.ts, self.tm)
            d = ins.cost
            self.ts, self.tm, self.tv = t + d, t + d + 2, max(self.tv, t + d + 4)
        else:
            t = self.ts
            self.ts = t + (4 * ins.n if k == 'nop' else ins.cost)
        return t

    def end(self):
        return max(self.ts, self.tv)


def dep(a, b):
    wa, wb = set(a.wr), set(b.wr)
    if wa & (set(b.rd) | wb) or wb & set(a.rd):
        return True
    return 'exec' in wa or 'exec' in wb


def order_gap(lst):
    out = []
    for ins in lst:
        k = len(out)
        if ins.kind in MEM or ins.kind in ('salu', 'waitvm', 'waitlg', 'bar', 'smem', 'wait'):
            if not (ins.kind == 'salu' and ins.op.startswith(('s_cbranch', 's_branch', 's_cmp'))) and not getattr(ins, 'pin', False):
                while k and out[k - 1].kind in VAL and not dep(out[k - 1], ins):
                    k -= 1
        out.insert(k, ins)
    return out


def flat_items(it):
    if isinstance(it, (list, tuple)):
        return [y for x in it for y in flat_items(x)]
    return [it]


class Sched:
    def __init__(self):
        self.spine = []
        self.gaps = {}
        self.closed = set()

    def mfma(self, ins):
        self.spine.append(ins)
        return len(self.spine) - 1

    def n(self):
        return len(self.spine)

    def span(self, g):
        return 4 * self.spine[g].passes

    def time(self, g, extra=()):
        c = Clock()
        c.step(self.spine[g])
        for x in order_gap(self.gaps.get(g, []) + list(extra)):
            c.step(x)
        return c.end()

    def put(self, g, ins):
        self.gaps.setdefault(g, []).extend(flat_items(ins))
        return g

    def fits(self, g, it, slack):
        if g in self.closed:
            return False
        it = flat_items(it)
        for x in it:
            if x.kind in MEM and any(y.kind in VAL and dep(y, x) for y in self.gaps.get(g, [])):
                return False
        return self.time(g, it) <= self.span(g) - slack

    def nmem(self, g):
        return sum(x.kind in MEM for x in self.gaps.get(g, []))

    def spread(self, seq, g0, g1, dense=False, slack=0, maxmem=1):
        out = []
        prev = g0
        n = len(seq)
        for k, it in enumerate(seq):
            m = any(x.kind in MEM for x in flat_items(it))
            g0k = prev if dense else max(prev, g0 + k * (g1 - g0 + 1) // n)
            for mm in range(maxmem, 5):
                g = g0k
                while g <= g1 and not (self.fits(g, it, slack) and (not m or self.nmem(g) < mm)):
                    g += 1
                room = sum(max(0, mm - self.nmem(x)) for x in range(g, g1 + 1) if x not in self.closed)
                if g <= g1 and (not m or room >= sum(any(x.kind in MEM for x in flat_items(y)) for y in seq[k:])):
                    break
            g = min(g, g1)
            self.put(g, it)
            prev = g
            out.append(g)
        return out

    def fill(self, seq, g0, g1, lo=None, hi=None):
        lo, hi = lo or {}, hi or {}
        for slack in (16, 12, 8, 4, 0, None):
            save = {g: list(self.gaps.get(g, [])) for g in range(g0, g1 + 1)}
            g = g0
            ok = True
            out = []
            for k, it in enumerate(seq):
                g = max(g, lo.get(k, g))
                lim = min([g1] + [v for kk, v in hi.items() if kk >= k])
                while g < lim and not self.fits(g, it, slack or 0):
                    g += 1
                if slack is not None and not self.fits(g, it, slack):
                    ok = False
                    break
                self.put(g, it)
                out.append(g)
            if ok:
                return out
            for gg, v in save.items():
                self.gaps[gg] = v

    def linear(self):
        out = list(self.gaps.get(-1, []))
        for g, m in enumerate(self.spine):
            out.append(m)
            lst = self.gaps.get(g, [])
            out.extend(order_gap(lst) if len(lst) < 14 else lst)
        return out


class Op:
    def __init__(self, ins):
        self.ins = ins
        self.done = None


def insert_waits(prog, verbose=True, lgage=200, hoist=True):
    out = []
    vm, lg = [], []
    epoch = 0
    regions = {}
    val = {}
    errors = []
    clk = Clock()

    def emit_wait(nv, nl, up=False):
        nonlocal vm, lg
        s = []
        if nl is not None and nl < len(lg):
            while nl > 0 and clk.ts - lg[len(lg) - nl].t >= lgage:
                nl -= 1
        if nv is not None:
            nv = min(nv, 63)
            if nv < len(vm):
                s.append("vmcnt(%d)" % nv)
                for o in vm[:len(vm) - nv]:
                    o.done = epoch
                vm = vm[len(vm) - nv:]
        if nl is not None:
            nl = min(nl, 15)
            if nl < len(lg):
                s.append("lgkmcnt(%d)" % nl)
                for o in lg[:len(lg) - nl]:
                    o.done = epoch
                lg = lg[len(lg) - nl:]
        if s:
            k = len(out)
            while up and hoist and k and out[k - 1].kind in VAL and len(out) - k < 8:
                k -= 1
            if k and out[k - 1].kind in VAL:
                k = len(out)
            out.insert(k, I("s_waitcnt " + " ".join(s)))

    def after(lst, pred):
        k = None
        for i, o in enumerate(lst):
            if pred(o):
                k = i
        return None if k is None else len(lst) - 1 - k

    def settled(o, priv):
        return o.done is not None and (priv or o.done < epoch)

    for ins in prog:
        k = ins.kind
        if k == 'waitvm':
            emit_wait(after(vm, lambda o: o.ins.tag in ins.tag), None)
            continue
        if k == 'waitlg':
            emit_wait(None, after(lg, lambda o: '*' in ins.tag or o.ins.tag in ins.tag))
            continue
        if k == 'reset':
            for o in vm + lg:
                o.done = epoch
            vm, lg = [], []
            out.append(ins)
            continue
        if k == 'wait':
            mv = re.search(r'vmcnt\((\d+)\)', ins.text)
            ml = re.search(r'lgkmcnt\((\d+)\)', ins.text)
            n0 = len(out)
            emit_wait(int(mv.group(1)) if mv else None, int(ml.group(1)) if ml else None)
            del out[n0:]
            out.append(ins)
            continue
        touched = set(ins.rd) | set(ins.wr)
        rdset = set(ins.rd)
        nv = after(vm, lambda o: set(o.ins.wr) & (rdset if k == 'vld' else touched))
        nl = after(lg, lambda o: set(o.ins.wr) & (rdset if k == 'dsr' else touched))
        if ins.lr and ins.lr[2]:
            st = regions.get(ins.lr[0])
            if st:
                ws = [o for o in st['w'] if o.done is None]
                a = after(vm, lambda o: o in ws)
                nv = a if nv is None else (nv if a is None else min(a, nv))
        if ins.lw and ins.lw[2] and k == 'dma':
            st = regions.get(ins.lw[0])
            if st and st['c'] != ins.lw[1]:
                rs = [o for o in st['r'] if o.done is None]
                a = after(lg, lambda o: o in rs)
                nl = a if nl is None else (nl if a is None else min(a, nl))
        emit_wait(nv, nl, k == 'mfma')
        op = Op(ins)
        op.t = clk.step(ins)
        if ins.lr:
            reg, c, priv = ins.lr
            st = regions.get(reg)
            if not st or st['c'] != c:
                errors.append("LDS read of %s expects %s has %s: %s" % (reg, c, st and st['c'], ins.text))
            else:
                for o in st['w']:
                    pv = priv and o.ins.lw[2]
                    if not (settled(o, pv) or (pv and o.ins.kind == 'dsw')):
                        errors.append("LDS RAW race %s %s: %s" % (reg, c, ins.text))
                        break
                st['r'].append(op)
        if ins.lw:
            reg, c, priv = ins.lw
            st = regions.get(reg)
            if not st or st['c'] != c:
                if st:
                    for o in st['r']:
                        pv = priv and o.ins.lr[2]
                        if not (settled(o, pv) or (pv and k == 'dsw')):
                            errors.append("LDS WAR race %s %s->%s: %s" % (reg, st['c'], c, ins.text))
                            break
                    for o in st['w']:
                        if not settled(o, priv and o.ins.lw[2]):
                            errors.append("LDS WAW race %s %s->%s: %s" % (reg, st['c'], c, ins.text))
                            break
                st = regions[reg] = {'c': c, 'w': [], 'r': []}
            st['w'].append(op)
        if ins.ex:
            for oi, t in ins.ex.items():
                for r in ins.ops[oi]:
                    if val.get(r) != t:
                        errors.append("value tag: %s operand %d reg %s expects %s has %s" % (ins.text, oi, r, t, val.get(r)))
                        break
        for r in ins.wr:
            val[r] = ins.vt
        if k in ('dma', 'vld', 'vst'):
            if len(vm) >= 63:
                errors.append("more than 63 vm ops in flight at " + ins.text)
            vm.append(op)
        elif k in ('dsr', 'dsw'):
            lg.append(op)
        elif k == 'bar':
            epoch += 1
        out.append(ins)
    if errors:
        for e in errors[:20]:
            print("ERROR", e)
        raise SystemExit("%d schedule errors" % len(errors))
    return out


def need_ws(p, c):
    n = 0
    prw, crd, cwr = set(p.wr), set(c.rd), set(c.wr)
    if p.kind in VAL:
        vec = {r for r in prw if r[0] in 'va' and r != 'vcc'}
        sca = prw - vec
        if c.kind == 'mfma' and vec & crd:
            n = 2
        if c.kind == 'perm' and vec & crd:
            n = 2
        if c.kind == 'valu' and c.op.startswith(('v_readfirstlane', 'v_readlane')) and vec & crd:
            n = max(n, 1)
        if p.kind == 'trans' and c.kind != 'trans' and vec & crd:
            n = max(n, 1)
        if sca & crd:
            n = max(n, 5 if c.kind in MEM else 2 if c.kind in VAL else 1)
        if 'vcc' in sca and c.kind == 'salu' and c.op.startswith('s_cbranch_vcc'):
            n = max(n, 5)
    elif p.kind == 'mfma':
        big = 12 if p.passes == 8 else 8
        if c.kind == 'mfma':
            if prw & (set(c.ops[1]) | set(c.ops[2])):
                n = big
            same = c.passes == p.passes
            if prw & set(c.ops[3]) and not (same and c.ops[3] == p.wr):
                n = max(n, big - 2)
            if prw & cwr and not (same and c.wr == p.wr):
                n = max(n, big)
        elif c.kind in VAL or c.kind in MEM:
            if prw & (crd | cwr):
                n = big
            if c.kind in VAL and set(p.ops[3]) & cwr:
                n = max(n, p.passes - 1)
    elif p.kind == 'salu':
        if 'm0' in prw and c.kind == 'dma':
            n = 1
    elif p.kind == 'vst':
        if set(p.wide) & cwr:
            n = 2
    return n


def insert_nops(prog, timed=True):
    out = []
    hist = []
    idx = t = 0
    lastm = None
    added = 0
    for ins in prog:
        if ins.kind in ('label', 'comment', 'reset'):
            out.append(ins)
            continue
        tt = t
        if ins.kind == 'mfma' and lastm:
            tt = max(tt, lastm[0] + lastm[1])
        short = 0
        for p, pi, pt in hist[-16:]:
            n = need_ws(p, ins)
            if n:
                s = n - (idx - pi - 1)
                if timed and p.kind == 'mfma':
                    s = min(s, 0 if tt >= pt + n + 2 else pt + n + 2 - t)
                short = max(short, s)
        while short > 0:
            k = min(short, 8)
            out.append(I("s_nop %d" % (k - 1)))
            idx += k
            t += k
            added += k
            short -= k
        if ins.kind == 'mfma':
            if lastm:
                t = max(t, lastm[0] + lastm[1])
            lastm = (t, ins.passes)
        hist.append((ins, idx, t))
        step = ins.n if ins.kind == 'nop' else 1
        idx += step
        t += step
        out.append(ins)
    return out, added


def estimate(prog):
    res = []
    name, mf, t0 = 'start', 0, 0
    c = Clock()
    for ins in prog:
        if ins.kind == 'comment' and ins.text.startswith('; @'):
            res.append((name, c.ts - t0, mf))
            name, t0, mf = ins.text[3:], c.ts, 0
        c.step(ins)
        if ins.kind == 'mfma':
            mf += 4 * ins.passes
    res.append((name, c.ts - t0, mf))
    return res


def text_of(prog):
    L = []
    for ins in prog:
        L.append(ins.text if ins.kind == 'label' else "    " + ins.text)
    return "\n".join(L) + "\n"
```

```python
import gen
gen.gen("k/v2.s")
gen.gen("k/v2_nt.s", touch=0)
gen.gen("k/v2_pol.s", wqp=' nt', xp=' nt', tp=' nt')
gen.gen("k/v2_pol0.s", wqp=' nt', xp=' nt', touch=0)
gen.gen("k/v2_slow.s", force_slow=1)
```
